```python
import torch

def _softmax(x, axis=-1):
    return torch.softmax(x, dim=axis)
def _gelu(x):
    return torch.nn.functional.gelu(x, approximate="tanh")
def _silu(x):
    return torch.nn.functional.silu(x)
def _sigmoid(x):
    return torch.sigmoid(x)
def _layernorm(x, axis=-1, eps=1e-5):
    m = x.mean(dim=axis, keepdim=True)
    v = x.var(dim=axis, keepdim=True, unbiased=False)
    return (x - m) / torch.sqrt(v + eps)
def _scatter_add(tgt, idx, src, axis=0):
    return tgt.clone().index_add_(axis, idx, src)
def _segment_sum(src, seg, n):
    out = torch.zeros((n,) + src.shape[1:], dtype=src.dtype)
    return out.index_add_(0, seg, src)
def _pad(x, pw):
    flat = tuple(v for pair in reversed(pw) for v in pair)
    return torch.nn.functional.pad(x, flat)

kernel_name = 'sequential_preLN__mha_block__dense_activation_squared_relu__prompt'

def setup_inputs():

    _w = (lambda a: (lambda t: t.to(torch.bfloat16) if t.is_floating_point() else t)(torch.as_tensor(a)))
    def _A_setup():
        B, S, D, H = 1, 2048, 512, 32
        return {
            "x": _w((lambda *s: torch.randn(*s, dtype=torch.bfloat16) * 0.05)(B, S, D)),
            "wqkv": _w((lambda *s: torch.randn(*s, dtype=torch.bfloat16) * 0.05)(D, 3 * D)),
            "wo": _w((lambda *s: torch.randn(*s, dtype=torch.bfloat16) * 0.05)(D, D)),
        }
    _A_in = _A_setup()

    def _B_setup():
        B, S, D, F = 1, 2048, 512, 1376
        return {
            "x": _w((lambda *s: torch.randn(*s, dtype=torch.bfloat16) * 0.05)(B, S, D)),
            "w1": _w((lambda *s: torch.randn(*s, dtype=torch.bfloat16) * 0.05)(D, F)),
            "b1": _w((lambda *s: torch.randn(*s, dtype=torch.bfloat16) * 0.4)(F)),
            "w2": _w((lambda *s: torch.randn(*s, dtype=torch.bfloat16) * 0.05)(F, D)),
            "b2": _w((lambda *s: torch.randn(*s, dtype=torch.bfloat16) * 1.6)(D)),
        }
    _B_in = _B_setup()

    return {
        "A_x": _A_in["x"],
        "A_wqkv": _A_in["wqkv"],
        "A_wo": _A_in["wo"],
        "B_x": _B_in["x"],
        "B_w1": _B_in["w1"],
        "B_b1": _B_in["b1"],
        "B_w2": _B_in["w2"],
        "B_b2": _B_in["b2"],
    }

def reference(A_x, A_wqkv, A_wo, B_x, B_w1, B_b1, B_w2, B_b2):
    def _A_ref(x, wqkv, wo):
        B, S, D = x.shape
        H = 32
        Dh = D // H
        qkv = (lambda x, *d: x.permute(*d))((x @ wqkv).reshape(B, S, 3, H, Dh), 2, 0, 3, 1, 4)
        q, k, v = qkv[0], qkv[1], qkv[2]
        scores = torch.einsum("bhqd,bhkd->bhqk", q, k) * (Dh ** -0.5)
        p = _softmax(scores, axis=-1)
        o = torch.einsum("bhqk,bhkd->bhqd", p, v)
        return (lambda x, *d: x.permute(*d))(o, 0, 2, 1, 3).reshape(B, S, D) @ wo

    def _B_ref(x, w1, b1, w2, b2):
        h = torch.einsum("bsd,df->bsf", x, w1) + b1
        zero = torch.zeros_like(h)
        r = torch.where(h > zero, h, zero)
        h = r * r
        out = torch.einsum("bsf,fd->bsd", h, w2) + b2
        return out

    x = A_x
    h = x + _A_ref(_layernorm(x, axis=-1), A_wqkv, A_wo)
    h2 = h + _B_ref(_layernorm(h, axis=-1), B_w1, B_b1, B_w2, B_b2)
    return h2
```

```python
class Asm:
    def __init__(self):
        self.lines=[]
        self.uid=0
    def __call__(self, s):
        for l in s.split("\n"):
            self.lines.append(l)
    def e(self, s):
        self.lines.append("  "+s)
    def label(self, s):
        self.lines.append(s+":")
    def newlabel(self, p="L"):
        self.uid+=1
        return f"{p}_{self.uid}"
    def text(self):
        return "\n".join(self.lines)+"\n"

def vr(a,n=1):
    return f"v{a}" if n==1 else f"v[{a}:{a+n-1}]"
def sr(a,n=1):
    return f"s{a}" if n==1 else f"s[{a}:{a+n-1}]"
def ar(a,n=1):
    return f"a{a}" if n==1 else f"a[{a}:{a+n-1}]"

def kernel_begin(A,name):
    A(f".globl {name}\n.p2align 8\n.type {name},@function\n{name}:")
def kernel_desc(name,vgpr,sgpr=96,agpr=0):
    acc=(vgpr+3)//4*4
    nfv=acc+agpr if agpr else vgpr
    return f'''.p2align 6
.amdhsa_kernel {name}
  .amdhsa_next_free_vgpr {nfv}
  .amdhsa_next_free_sgpr {sgpr}
  .amdhsa_accum_offset {acc}
  .amdhsa_group_segment_fixed_size 0
  .amdhsa_kernarg_size 88
  .amdhsa_user_sgpr_count 2
  .amdhsa_user_sgpr_kernarg_segment_ptr 1
  .amdhsa_system_sgpr_workgroup_id_x 1
  .amdhsa_float_denorm_mode_32 3
.end_amdhsa_kernel
'''
def srd(A,d,lo,hi,nbytes):
    A.e(f"s_mov_b32 s{d}, s{lo}")
    A.e(f"s_and_b32 s{d+1}, s{hi}, 0xffff")
    A.e(f"s_mov_b32 s{d+2}, {nbytes}")
    A.e(f"s_mov_b32 s{d+3}, 0x20000")

PROF_WS = 32<<20
class Prof:
    def __init__(self, enabled, kidx):
        self.en=enabled; self.kidx=kidx; self.n=0
    def stamp(self, A, idx):
        if not self.en: return
        A.e(f"s_memrealtime s[{64+4*idx}:{65+4*idx}]")
        A.e(f"s_memtime s[{66+4*idx}:{67+4*idx}]")
        A.e("s_waitcnt lgkmcnt(0)")
    def flush(self, A, wave_sreg, wsptr_lo=8, nst=6, tmpv=(1,2)):
        if not self.en: return
        a,b=tmpv
        A.e(f"s_lshl_b32 s62, s2, 3")
        A.e(f"s_add_u32 s62, s62, s{wave_sreg}")
        A.e(f"s_lshl_b32 s62, s62, 6")
        A.e(f"s_add_u32 s62, s62, {PROF_WS + self.kidx*(256*8*64)}")
        A.e(f"s_add_u32 s60, s{wsptr_lo}, s62")
        A.e(f"s_addc_u32 s61, s{wsptr_lo+1}, 0")
        A.e(f"v_mov_b32 v{a}, 0")
        for i in range(nst):
            A.e(f"v_mov_b32 v{b}, s{64+4*i}")
            A.e(f"global_store_dword v{a}, v{b}, s[60:61] offset:{8*i}")
            A.e(f"v_mov_b32 v{b}, s{66+4*i}")
            A.e(f"global_store_dword v{a}, v{b}, s[60:61] offset:{8*i+4}")
        A.e("s_waitcnt vmcnt(0)")

class Prof2:
    def __init__(self, enabled, focus=None):
        self.en=enabled; self.names={}; self.focus=focus; self.auto={}
    def fine(self, A, name):
        if not self.en or not self.focus or not name.startswith(self.focus): return
        if name not in self.auto: self.auto[name]=len(self.auto)+1
        idx=self.auto[name]
        assert idx<32
        self.names[idx]=name
        A.e("s_memrealtime s[96:97]")
        A.e("s_waitcnt lgkmcnt(0)")
        A.e(f"s_mov_b32 s{64+idx}, s96")
    def stamp(self, A, idx, name=None):
        if not self.en: return
        if self.focus and idx!=0:
            if name and name.startswith(self.focus): self.fine(A,name)
            return
        if name: self.names[idx]=name
        A.e("s_memrealtime s[96:97]")
        A.e("s_waitcnt lgkmcnt(0)")
        A.e(f"s_mov_b32 s{64+idx}, s96")
    def init(self, A):
        if not self.en: return
        for i in range(32): A.e(f"s_mov_b32 s{64+i}, 0")
    def flush(self, A, wave_sreg, wsptr_lo=8, tmpv=(1,2), **kw):
        if not self.en: return
        a,b=tmpv
        A.e(f"s_lshl_b32 s62, s2, 3")
        A.e(f"s_add_u32 s62, s62, s{wave_sreg}")
        A.e(f"s_lshl_b32 s62, s62, 7")
        A.e(f"s_add_u32 s62, s62, {PROF_WS}")
        A.e(f"s_add_u32 s60, s{wsptr_lo}, s62")
        A.e(f"s_addc_u32 s61, s{wsptr_lo+1}, 0")
        A.e(f"v_mov_b32 v{a}, 0")
        for i in range(32):
            A.e(f"v_mov_b32 v{b}, s{64+i}")
            A.e(f"global_store_dword v{a}, v{b}, s[60:61] offset:{4*i}")
        A.e("s_waitcnt vmcnt(0)")
```

```python
MB=1<<20
WS_Q=0; WS_K=2*MB; WS_V=4*MB; WS_O=6*MB; WS_H=8*MB; WS_ST=10*MB; WS_H1=11*MB
WS_WOF=17*MB; WS_W1F=18*MB; WS_W2F=20*MB; WS_FLAG=22*MB; WS_XF=23*MB
WS_USED=25*MB
S=2048; D=512; F=1376
KA_X=0; KA_WQKV=8; KA_WO=16; KA_BX=24; KA_W1=32; KA_B1=40; KA_W2=48; KA_B2=56; KA_OUT=64; KA_DBG=72; KA_WS=80
QSCALE=0.25*1.4426950408889634
import struct
def f2u(x): return struct.unpack("<I",struct.pack("<f",x))[0]
ONES_BF16=0x3f803f80
FL_A=0; FL_B=1; FL_C=2; FL_D=3; FL_W=4
def flag_base(k): return WS_FLAG + k*256*128
```

```python
import sys, importlib
from asmlib import *
from common import *
KN="sequential_preLN__mha_block__dense_activation_squared_relu__prompt_kernel"
def make(modname, out, opts=None):
    mega=importlib.import_module(modname)
    body=Asm()
    lds=mega.gen_mega(body,KN,opts=opts)
    hdr=open('sequential_preLN__mha_block__dense_activation_squared_relu__prompt.s.ref').read().split("; Override launch")[0]
    hdr+=f"; @launch grid=(256,1,1) block=(512,1,1) lds={lds}\n"
    txt=hdr+'.amdgcn_target "amdgcn-amd-amdhsa--gfx950"\n.text\n'+body.text()+'.section .rodata,"a"\n'+kernel_desc(KN,256,sgpr=102)
    open(out,"w").write(txt)
if __name__=="__main__":
    make(sys.argv[1], sys.argv[2] if len(sys.argv)>2 else "sequential_preLN__mha_block__dense_activation_squared_relu__prompt.s")
```

```python
import sys, importlib
from asmlib import *
from common import *
KN="sequential_preLN__mha_block__dense_activation_squared_relu__prompt_kernel"
def make(modname, out, opts=None, prof=False):
    mega=importlib.import_module(modname)
    body=Asm()
    lds=mega.gen_mega(body,KN,opts=opts,prof=prof)
    hdr=open('sequential_preLN__mha_block__dense_activation_squared_relu__prompt.s.ref').read().split("; Override launch")[0]
    hdr+=f"; @launch grid=(256,1,1) block=(512,1,1) lds={lds}\n"
    txt=hdr+'.amdgcn_target "amdgcn-amd-amdhsa--gfx950"\n.text\n'+body.text()+'.section .rodata,"a"\n'+kernel_desc(KN,256,sgpr=102)
    open(out,"w").write(txt)
if __name__=="__main__":
    make(sys.argv[1], sys.argv[2] if len(sys.argv)>2 else "sequential_preLN__mha_block__dense_activation_squared_relu__prompt.s")
    if len(sys.argv)>3 and sys.argv[3]=="dbg":
        make(sys.argv[1], sys.argv[2], opts={"dbgtime":[0,2,3,6,7,8,10,13,16,19,20,23,24,26]}, prof=True)
```

```python
class Asm:
    def __init__(self):
        self.lines=[]
        self.uid=0
    def __call__(self, s):
        for l in s.split("\n"):
            self.lines.append(l)
    def e(self, s):
        self.lines.append("  "+s)
    def label(self, s):
        self.lines.append(s+":")
    def newlabel(self, p="L"):
        self.uid+=1
        return f"{p}_{self.uid}"
    def text(self):
        return "\n".join(self.lines)+"\n"

def vr(a,n=1):
    return f"v{a}" if n==1 else f"v[{a}:{a+n-1}]"
def sr(a,n=1):
    return f"s{a}" if n==1 else f"s[{a}:{a+n-1}]"
def ar(a,n=1):
    return f"a{a}" if n==1 else f"a[{a}:{a+n-1}]"

def kernel_begin(A,name):
    A(f".globl {name}\n.p2align 8\n.type {name},@function\n{name}:")
def kernel_desc(name,vgpr,sgpr=96,agpr=0):
    acc=(vgpr+3)//4*4
    nfv=acc+agpr if agpr else vgpr
    return f'''.p2align 6
.amdhsa_kernel {name}
  .amdhsa_next_free_vgpr {nfv}
  .amdhsa_next_free_sgpr {sgpr}
  .amdhsa_accum_offset {acc}
  .amdhsa_group_segment_fixed_size 0
  .amdhsa_kernarg_size 88
  .amdhsa_user_sgpr_count 2
  .amdhsa_user_sgpr_kernarg_segment_ptr 1
  .amdhsa_system_sgpr_workgroup_id_x 1
  .amdhsa_float_denorm_mode_32 3
.end_amdhsa_kernel
'''
def srd(A,d,lo,hi,nbytes):
    A.e(f"s_mov_b32 s{d}, s{lo}")
    A.e(f"s_and_b32 s{d+1}, s{hi}, 0xffff")
    A.e(f"s_mov_b32 s{d+2}, {nbytes}")
    A.e(f"s_mov_b32 s{d+3}, 0x20000")

PROF_WS = 32<<20
class Prof:
    def __init__(self, enabled, kidx):
        self.en=enabled; self.kidx=kidx; self.n=0
    def stamp(self, A, idx):
        if not self.en: return
        A.e(f"s_memrealtime s[{64+4*idx}:{65+4*idx}]")
        A.e(f"s_memtime s[{66+4*idx}:{67+4*idx}]")
        A.e("s_waitcnt lgkmcnt(0)")
    def flush(self, A, wave_sreg, wsptr_lo=8, nst=6, tmpv=(1,2)):
        if not self.en: return
        a,b=tmpv
        A.e(f"s_lshl_b32 s62, s2, 3")
        A.e(f"s_add_u32 s62, s62, s{wave_sreg}")
        A.e(f"s_lshl_b32 s62, s62, 6")
        A.e(f"s_add_u32 s62, s62, {PROF_WS + self.kidx*(256*8*64)}")
        A.e(f"s_add_u32 s60, s{wsptr_lo}, s62")
        A.e(f"s_addc_u32 s61, s{wsptr_lo+1}, 0")
        A.e(f"v_mov_b32 v{a}, 0")
        for i in range(nst):
            A.e(f"v_mov_b32 v{b}, s{64+4*i}")
            A.e(f"global_store_dword v{a}, v{b}, s[60:61] offset:{8*i}")
            A.e(f"v_mov_b32 v{b}, s{66+4*i}")
            A.e(f"global_store_dword v{a}, v{b}, s[60:61] offset:{8*i+4}")
        A.e("s_waitcnt vmcnt(0)")

class Prof2:
    def __init__(self, enabled, focus=None):
        self.en=enabled; self.names={}; self.focus=focus; self.auto={}
        import os
        self.ins="s_memtime" if os.environ.get("PROFCYC") else "s_memrealtime"
    def fine(self, A, name):
        if not self.en or not self.focus or not name.startswith(self.focus): return
        if name not in self.auto: self.auto[name]=len(self.auto)+1
        idx=self.auto[name]
        assert idx<32
        self.names[idx]=name
        A.e(f"{self.ins} s[96:97]")
        A.e("s_waitcnt lgkmcnt(0)")
        A.e(f"s_mov_b32 s{64+idx}, s96")
    def pre(self, A, name):
        self._pend=None
        if not self.en or not self.focus or not name.startswith(self.focus): return
        if name not in self.auto: self.auto[name]=len(self.auto)+1
        self._pend=self.auto[name]; self.names[self._pend]=name
        A.e(f"{self.ins} s[96:97]")
    def post(self, A):
        if getattr(self,"_pend",None) is None: return
        A.e(f"s_mov_b32 s{64+self._pend}, s96"); self._pend=None
    def stamp(self, A, idx, name=None):
        if not self.en: return
        if self.focus and idx!=0:
            if name and name.startswith(self.focus): self.fine(A,name)
            return
        if name: self.names[idx]=name
        A.e(f"{self.ins} s[96:97]")
        A.e("s_waitcnt lgkmcnt(0)")
        A.e(f"s_mov_b32 s{64+idx}, s96")
    def init(self, A):
        if not self.en: return
        for i in range(32): A.e(f"s_mov_b32 s{64+i}, 0")
    def flush(self, A, wave_sreg, wsptr_lo=8, tmpv=(1,2), **kw):
        if not self.en: return
        a,b=tmpv
        A.e(f"s_lshl_b32 s62, s2, 3")
        A.e(f"s_add_u32 s62, s62, s{wave_sreg}")
        A.e(f"s_lshl_b32 s62, s62, 7")
        A.e(f"s_add_u32 s62, s62, {PROF_WS}")
        A.e(f"s_add_u32 s60, s{wsptr_lo}, s62")
        A.e(f"s_addc_u32 s61, s{wsptr_lo+1}, 0")
        A.e(f"v_mov_b32 v{a}, 0")
        for i in range(32):
            A.e(f"v_mov_b32 v{b}, s{64+i}")
            A.e(f"global_store_dword v{a}, v{b}, s[60:61] offset:{4*i}")
        A.e("s_waitcnt vmcnt(0)")
```
